```python
import torch

def _softmax(x, axis=-1):
    return torch.softmax(x, dim=axis)
def _gelu(x):
    return torch.nn.functional.gelu(x, approximate="tanh")
def _silu(x):
    return torch.nn.functional.silu(x)
def _sigmoid(x):
    return torch.sigmoid(x)
def _layernorm(x, axis=-1, eps=1e-5):
    m = x.mean(dim=axis, keepdim=True)
    v = x.var(dim=axis, keepdim=True, unbiased=False)
    return (x - m) / torch.sqrt(v + eps)
def _scatter_add(tgt, idx, src, axis=0):
    return tgt.clone().index_add_(axis, idx, src)
def _segment_sum(src, seg, n):
    out = torch.zeros((n,) + src.shape[1:], dtype=src.dtype)
    return out.index_add_(0, seg, src)
def _pad(x, pw):
    flat = tuple(v for pair in reversed(pw) for v in pair)
    return torch.nn.functional.pad(x, flat)

kernel_name = 'standalone__rmsnorm__sampling'

def setup_inputs():

    _w = (lambda a: (lambda t: t.to(torch.bfloat16) if t.is_floating_point() else t)(torch.as_tensor(a)))
    B, S, D = 1024, 8, 1024
    return {
        "x": _w((lambda *s: torch.randn(*s, dtype=torch.bfloat16) * 0.05)(B, S, D)),
        "g": _w((lambda *s: torch.randn(*s, dtype=torch.bfloat16) * 0.05)(D) + 1.0),
    }

def reference(x, g):
    rms = torch.sqrt((x * x).mean(axis=-1, keepdims=True) + 1e-6)
    return x / rms * g
```

```python
import argparse

NAME = "standalone__rmsnorm__sampling"
ROWS = 8192
ROWB = 2048

HEADER = """; Kernarg layout for this problem (40 bytes, ptrs only, base s[0:1]):
;   offset   0: d_in[0] x  shape=(1024, 8, 1024) dtype=bfloat16 strides=(16384, 2048, 2) contiguous=True
;   offset   8: d_in[1] g  shape=(1024,) dtype=bfloat16 strides=(2,) contiguous=True
"""


def log2(n):
    k = n.bit_length() - 1
    assert 1 << k == n
    return k


def gen(R=2, W=4, ld="", st="", gld="", mode="P", mapping="contig"):
    nwg = ROWS // (R * W)
    o = []
    e = o.append
    e(HEADER.rstrip())
    e(f"; @launch grid=({nwg},1,1) block=({64*W},1,1) lds=0")
    e('.amdgcn_target "amdgcn-amd-amdhsa--gfx950"')
    e(".text")
    e(f".globl {NAME}_kernel")
    e(".p2align 8")
    e(f".type {NAME}_kernel,@function")
    e(f"{NAME}_kernel:")

    e("    s_load_dwordx2 s[4:5], s[0:1], 0")
    e("    s_load_dwordx2 s[8:9], s[0:1], 8")
    e("    s_load_dwordx2 s[12:13], s[0:1], 16")
    e("    s_mov_b32 s6, 0x1000000")
    e("    s_mov_b32 s7, 0x20000")
    e("    s_movk_i32 s10, 0x800")
    e("    s_mov_b32 s11, s7")
    e("    s_mov_b32 s14, s6")
    e("    s_mov_b32 s15, s7")
    e("    v_and_b32 v1, 63, v0")
    e("    v_lshlrev_b32 v1, 4, v1")
    e("    v_lshrrev_b32 v2, 6, v0")
    if mapping == "contig":
        wave_stride, row_stride = R * ROWB, ROWB
        e(f"    s_lshl_b32 s3, s2, {log2(W * R * ROWB)}")
    elif mapping == "wgrows":
        wave_stride, row_stride = ROWB, W * ROWB
        e(f"    s_lshl_b32 s3, s2, {log2(W * R * ROWB)}")
    elif mapping == "strided":
        wave_stride, row_stride = ROWB, nwg * W * ROWB
        e(f"    s_lshl_b32 s3, s2, {log2(W * ROWB)}")
        e(f"    s_cmp_ge_u32 s2, {nwg}")
        e("    s_cbranch_scc1 L_end")
    elif mapping.startswith("iod"):
        phase = int(mapping[3:])
        rows_wg = R * W
        assert rows_wg >= 4
        regb = 2 * rows_wg * ROWB
        e("    s_lshr_b32 s3, s2, 3")
        e("    s_lshl_b32 s3, s3, 2")
        e("    s_and_b32 s17, s2, 3")
        e("    s_or_b32 s3, s3, s17")
        e(f"    s_lshl_b32 s3, s3, {log2(regb)}")
        e("    s_lshr_b32 s17, s3, 19")
        e("    s_xor_b32 s17, s17, s2")
        if phase:
            e("    s_not_b32 s17, s17")
        e("    s_and_b32 s17, s17, 4")
        e("    s_lshl_b32 s17, s17, 11")
        e("    s_or_b32 s3, s3, s17")
        row_stride = None
        if R >= 4:
            wave_stride = 2 * R * ROWB
        else:
            e(f"    v_lshrrev_b32 v3, {log2(4 // R)}, v2")
            e(f"    v_and_b32 v2, {4 // R - 1}, v2")
            e(f"    v_lshl_add_u32 v2, v3, {log2(8 // R)}, v2")
            wave_stride = R * ROWB
    e(f"    v_lshl_add_u32 v2, v2, {log2(wave_stride)}, v1")
    e("    v_add_u32 v2, s3, v2")

    def rowoff(r):
        if row_stride is None:
            return (r // 4) * 16384 + (r % 4) * ROWB
        return r * row_stride

    def addr(r, half):
        off = rowoff(r) + half * 1024
        imm = off & 0xFFF
        base = off - imm
        so = "0" if base == 0 else f"s{soff[base]}"
        return f"{so} offen" + (f" offset:{imm}" if imm else "")

    soff = {}
    for r in range(R):
        base = rowoff(r) & ~0xFFF
        if base and base not in soff:
            soff[base] = 20 + len(soff)
            e(f"    s_mov_b32 s{soff[base]}, {base:#x}")
    e("    s_mov_b32 s16, 0xffff0000")

    G = 4
    GF = 12
    T = 28
    X = 44
    A = X + 8 * R
    EPS = 3
    nv = A + R

    e("    s_waitcnt lgkmcnt(0)")
    e(f"    buffer_load_dwordx4 v[{X}:{X+3}], v2, s[4:7], {addr(0,0)} {ld}")
    e(f"    buffer_load_dwordx4 v[{X+4}:{X+7}], v2, s[4:7], {addr(0,1)} {ld}")
    e(f"    buffer_load_dwordx4 v[{G}:{G+3}], v1, s[8:11], 0 offen {gld}")
    e(f"    buffer_load_dwordx4 v[{G+4}:{G+7}], v1, s[8:11], 0 offen offset:1024 {gld}")
    for r in range(1, R):
        x = X + 8 * r
        e(f"    buffer_load_dwordx4 v[{x}:{x+3}], v2, s[4:7], {addr(r,0)} {ld}")
        e(f"    buffer_load_dwordx4 v[{x+4}:{x+7}], v2, s[4:7], {addr(r,1)} {ld}")
    e(f"    v_mov_b32 v{EPS}, 0x358637bd")
    for r in range(R):
        e(f"    v_mov_b32 v{A+r}, 0")

    for r in range(R):
        x = X + 8 * r
        a = A + r
        e(f"    s_waitcnt vmcnt({2*(R-1)})")
        if r == 0:
            for d in range(8):
                if mode == "P":
                    e(f"    v_lshlrev_b32 v{GF+2*d}, 16, v{G+d}")
                else:
                    e(f"    v_and_b32 v{GF+2*d}, 0xffff, v{G+d}")
                e(f"    v_and_b32 v{GF+2*d+1}, s16, v{G+d}")
        for d in range(8):
            e(f"    v_dot2c_f32_bf16 v{a}, v{x+d}, v{x+d}")
        fill = []
        for d in range(8):
            if mode == "P":
                fill.append(f"    v_lshlrev_b32 v{T+2*d}, 16, v{x+d}")
                fill.append(f"    v_and_b32 v{T+2*d+1}, s16, v{x+d}")
            else:
                fill.append(f"    v_dot2_f32_bf16 v{T+2*d}, v{x+d}, v{GF+2*d}, 0")
                fill.append(f"    v_dot2_f32_bf16 v{T+2*d+1}, v{x+d}, v{GF+2*d+1}, 0")
        if mode == "P":
            for d in range(8):
                fill.append(f"    v_pk_mul_f32 v[{T+2*d}:{T+2*d+1}], v[{T+2*d}:{T+2*d+1}], v[{GF+2*d}:{GF+2*d+1}]")

        def pad(n):
            for _ in range(n):
                e(fill.pop(0) if fill else "    s_nop 0")

        pad(3)
        for ctl in ("quad_perm:[1,0,3,2] row_mask:0xf", "quad_perm:[2,3,0,1] row_mask:0xf",
                    "row_half_mirror row_mask:0xf", "row_mirror row_mask:0xf",
                    "row_bcast:15 row_mask:0xa", "row_bcast:31 row_mask:0xc"):
            e(f"    v_add_f32_dpp v{a}, v{a}, v{a} {ctl} bank_mask:0xf")
            if "bcast:31" not in ctl:
                pad(2)
        e(f"    v_fmamk_f32 v{a}, v{a}, 0x3a800000, v{EPS}")
        e(f"    v_rsq_f32 v{a}, v{a}")
        pad(1)
        e(f"    v_readlane_b32 s18, v{a}, 63")
        pad(max(3, len(fill)))
        if mode == "D":
            e("    s_nop 1")
        for d in range(8):
            e(f"    v_pk_mul_f32 v[{T+2*d}:{T+2*d+1}], v[{T+2*d}:{T+2*d+1}], s[18:19] op_sel_hi:[1,0]")
        for d in range(4):
            e(f"    v_cvt_pk_bf16_f32 v{x+d}, v{T+2*d}, v{T+2*d+1}")
        e(f"    buffer_store_dwordx4 v[{x}:{x+3}], v2, s[12:15], {addr(r,0)} {st}")
        for d in range(4, 8):
            e(f"    v_cvt_pk_bf16_f32 v{x+d}, v{T+2*d}, v{T+2*d+1}")
        e(f"    buffer_store_dwordx4 v[{x+4}:{x+7}], v2, s[12:15], {addr(r,1)} {st}")
    e("L_end:")
    e("    s_endpgm")
    e('.section .rodata,"a"')
    e(".p2align 6")
    e(f".amdhsa_kernel {NAME}_kernel")
    e(f"  .amdhsa_next_free_vgpr {nv}")
    e("  .amdhsa_next_free_sgpr 40")
    e(f"  .amdhsa_accum_offset {(nv + 3) // 4 * 4}")
    e("  .amdhsa_group_segment_fixed_size 0")
    e("  .amdhsa_kernarg_size 40")
    e("  .amdhsa_user_sgpr_count 2")
    e("  .amdhsa_user_sgpr_kernarg_segment_ptr 1")
    e("  .amdhsa_system_sgpr_workgroup_id_x 1")
    e("  .amdhsa_float_denorm_mode_32 3")
    e(".end_amdhsa_kernel")
    return "\n".join(l.rstrip() for l in o) + "\n"


if __name__ == "__main__":
    p = argparse.ArgumentParser()
    p.add_argument("-R", type=int, default=2)
    p.add_argument("-W", type=int, default=4)
    p.add_argument("--ld", default="")
    p.add_argument("--st", default="")
    p.add_argument("--gld", default="")
    p.add_argument("--mode", default="P")
    p.add_argument("--mapping", default="contig")
    p.add_argument("-o", default="/dev/stdout")
    a = p.parse_args()
    open(a.o, "w").write(gen(a.R, a.W, a.ld, a.st, a.gld, a.mode, a.mapping))
```

```python
import sys
sys.path.insert(0, "gen")
from gen import HEADER, NAME, ROWS, ROWB, log2


def gen(R=8, W=4, D=8, ld="", st="", gld="", mode="P", mapping="contig", st2=None, split=0, lds=0, gfirst=False, defer=0, bar=0, nost=0):
    D = min(D, R)
    nbuf = min(R, D + 1)
    nwg = ROWS // (R * W)
    o = []
    e = o.append
    e(HEADER.rstrip())
    e(f"; @launch grid=({nwg},1,1) block=({64*W},1,1) lds={lds}")
    e('.amdgcn_target "amdgcn-amd-amdhsa--gfx950"')
    e(".text")
    e(f".globl {NAME}_kernel")
    e(".p2align 8")
    e(f".type {NAME}_kernel,@function")
    e(f"{NAME}_kernel:")
    e("    s_load_dwordx2 s[4:5], s[0:1], 0")
    e("    s_load_dwordx2 s[8:9], s[0:1], 8")
    e("    s_load_dwordx2 s[12:13], s[0:1], 16")
    e("    s_mov_b32 s6, 0x1000000")
    e("    s_mov_b32 s7, 0x20000")
    e("    s_movk_i32 s10, 0x800")
    e("    s_mov_b32 s11, s7")
    e("    s_mov_b32 s14, s6")
    e("    s_mov_b32 s15, s7")
    e("    v_and_b32 v1, 63, v0")
    e("    v_lshlrev_b32 v1, 4, v1")
    e("    v_lshrrev_b32 v2, 6, v0")
    if mapping == "contig":
        wave_stride = R * ROWB
        rowoff = lambda r: r * ROWB
        e(f"    s_lshl_b32 s3, s2, {log2(W * R * ROWB)}")
    elif mapping == "wgrows":
        wave_stride = ROWB
        rowoff = lambda r: r * W * ROWB
        e(f"    s_lshl_b32 s3, s2, {log2(W * R * ROWB)}")
    elif mapping == "strided":
        wave_stride = ROWB
        rowoff = lambda r: r * nwg * W * ROWB
        e(f"    s_lshl_b32 s3, s2, {log2(W * ROWB)}")
        e(f"    s_cmp_ge_u32 s2, {nwg}")
        e("    s_cbranch_scc1 L_end")
    elif mapping.startswith("iod"):
        phase = int(mapping[3:])
        regb = 2 * R * W * ROWB
        e("    s_lshr_b32 s3, s2, 3")
        e("    s_lshl_b32 s3, s3, 2")
        e("    s_and_b32 s17, s2, 3")
        e("    s_or_b32 s3, s3, s17")
        e(f"    s_lshl_b32 s3, s3, {log2(regb)}")
        e("    s_lshr_b32 s17, s3, 19")
        e("    s_xor_b32 s17, s17, s2")
        if phase:
            e("    s_not_b32 s17, s17")
        e("    s_and_b32 s17, s17, 4")
        e("    s_lshl_b32 s17, s17, 11")
        e("    s_or_b32 s3, s3, s17")
        assert W >= 4
        if W > 4:
            e("    v_lshrrev_b32 v3, 2, v2")
            e("    v_and_b32 v2, 3, v2")
            e("    v_lshl_add_u32 v2, v3, 3, v2")
        wave_stride = ROWB
        rowoff = lambda r: r * (W // 4) * 16384
    e(f"    v_lshl_add_u32 v2, v2, {log2(wave_stride)}, v1")
    e("    v_add_u32 v2, s3, v2")

    soff = {}
    for r in range(R):
        base = rowoff(r) & ~0xFFF
        if base and base not in soff:
            soff[base] = 20 + len(soff)
            e(f"    s_mov_b32 s{soff[base]}, {base:#x}")

    def addr(r, half):
        off = rowoff(r) + half * 1024
        imm = off & 0xFFF
        base = off - imm
        so = "0" if base == 0 else f"s{soff[base]}"
        return f"{so} offen" + (f" offset:{imm}" if imm else "")

    e("    s_mov_b32 s16, 0xffff0000")
    EPS, A, GF, T = 3, 4, 6, 22
    G = T + 2
    X = 40
    nv = X + 8 * nbuf
    xr = lambda r: X + 8 * (r % nbuf)
    ops = []
    held = []
    assert not defer or D == R

    def load(r):
        for h in range(2):
            e(f"    buffer_load_dwordx4 v[{xr(r)+4*h}:{xr(r)+4*h+3}], v2, s[4:7], {addr(r,h)} {ld}")
            ops.append(("L", r))

    def loadg():
        e(f"    buffer_load_dwordx4 v[{G}:{G+3}], v1, s[8:11], 0 offen {gld}")
        e(f"    buffer_load_dwordx4 v[{G+4}:{G+7}], v1, s[8:11], 0 offen offset:1024 {gld}")
        ops.extend([("L", 0), ("L", 0)])

    e("    s_waitcnt lgkmcnt(0)")
    if gfirst:
        loadg()
    load(0)
    if not gfirst:
        loadg()
    for r in range(1, D):
        load(r)
    e(f"    v_mov_b32 v{EPS}, 0x358637bd")

    for r in range(R):
        x = xr(r)
        a = A
        e(f"    v_mov_b32 v{a}, 0")
        last = max(i for i, op in enumerate(ops) if op == ("L", r))
        e(f"    s_waitcnt vmcnt({len(ops) - 1 - last})")
        if r + D < R:
            load(r + D)
        if r == 0:
            for d in range(8):
                if mode == "P":
                    e(f"    v_lshlrev_b32 v{GF+2*d}, 16, v{G+d}")
                else:
                    e(f"    v_and_b32 v{GF+2*d}, 0xffff, v{G+d}")
                e(f"    v_and_b32 v{GF+2*d+1}, s16, v{G+d}")
        for d in range(8):
            e(f"    v_dot2c_f32_bf16 v{a}, v{x+d}, v{x+d}")
        fill = []
        for d in range(8):
            if mode == "P":
                fill.append(f"    v_lshlrev_b32 v{T+2*d}, 16, v{x+d}")
                fill.append(f"    v_and_b32 v{T+2*d+1}, s16, v{x+d}")
            else:
                fill.append(f"    v_dot2_f32_bf16 v{T+2*d}, v{x+d}, v{GF+2*d}, 0")
                fill.append(f"    v_dot2_f32_bf16 v{T+2*d+1}, v{x+d}, v{GF+2*d+1}, 0")
        if mode == "P":
            for d in range(8):
                fill.append(f"    v_pk_mul_f32 v[{T+2*d}:{T+2*d+1}], v[{T+2*d}:{T+2*d+1}], v[{GF+2*d}:{GF+2*d+1}]")

        def pad(n):
            for _ in range(n):
                e(fill.pop(0) if fill else "    s_nop 0")

        pad(3)
        for ctl in ("quad_perm:[1,0,3,2] row_mask:0xf", "quad_perm:[2,3,0,1] row_mask:0xf",
                    "row_half_mirror row_mask:0xf", "row_mirror row_mask:0xf",
                    "row_bcast:15 row_mask:0xa", "row_bcast:31 row_mask:0xc"):
            e(f"    v_add_f32_dpp v{a}, v{a}, v{a} {ctl} bank_mask:0xf")
            if "bcast:31" not in ctl:
                pad(2)
        e(f"    v_fmamk_f32 v{a}, v{a}, 0x3a800000, v{EPS}")
        e(f"    v_rsq_f32 v{a}, v{a}")
        pad(1)
        e(f"    v_readlane_b32 s18, v{a}, 63")
        pad(max(3, len(fill)))
        if mode == "D":
            e("    s_nop 1")
        pol = st if (st2 is None or r < split) else st2
        for h in range(2):
            for d in range(4 * h, 4 * h + 4):
                e(f"    v_pk_mul_f32 v[{T+2*d}:{T+2*d+1}], v[{T+2*d}:{T+2*d+1}], s[18:19] op_sel_hi:[1,0]")
            for d in range(4 * h, 4 * h + 4):
                e(f"    v_cvt_pk_bf16_f32 v{x+d}, v{T+2*d}, v{T+2*d+1}")
            s = f"    buffer_store_dwordx4 v[{x+4*h}:{x+4*h+3}], v2, s[12:15], {addr(r,h)} {pol}"
            if defer:
                held.append(s)
            else:
                e(s)
                ops.append(("S", r))
    if bar:
        e("    s_barrier")
    for s in held:
        if not nost:
            e(s)
    e("L_end:")
    e("    s_endpgm")
    e('.section .rodata,"a"')
    e(".p2align 6")
    e(f".amdhsa_kernel {NAME}_kernel")
    e(f"  .amdhsa_next_free_vgpr {nv}")
    e("  .amdhsa_next_free_sgpr 40")
    e(f"  .amdhsa_accum_offset {(nv + 3) // 4 * 4}")
    e("  .amdhsa_group_segment_fixed_size 0")
    e("  .amdhsa_kernarg_size 40")
    e("  .amdhsa_user_sgpr_count 2")
    e("  .amdhsa_user_sgpr_kernarg_segment_ptr 1")
    e("  .amdhsa_system_sgpr_workgroup_id_x 1")
    e("  .amdhsa_float_denorm_mode_32 3")
    e(".end_amdhsa_kernel")
    return "\n".join(l.rstrip() for l in o) + "\n"


def parse(spec):
    kw = {}
    for item in spec.split(","):
        k, v = item.split("=")
        kw[k] = int(v) if v.lstrip("-").isdigit() else v.replace("+", " ")
    return kw


if __name__ == "__main__":
    for spec in sys.argv[1:]:
        nm = "var/p_" + spec.replace("=", "").replace(",", "_").replace("+", "") + ".s"
        open("code/" + nm, "w").write(gen(**parse(spec)))
        print(nm)
```

```python
import sys
sys.path.insert(0, "gen")
from gen import HEADER, NAME, ROWS, ROWB, log2


def gen(R=8, W=4, D=8, ld="", st="", gld="", mode="P", mapping="contig", st2=None, split=0, lds=0, gfirst=False, defer=0, bar=0, nost=0, pf=0, barj=-1, nocomp=0, swz="", gate="", gj=2, prio=0, need=0, gj1=None):
    D = min(D, R)
    nbuf = min(R, D + 1)
    nwg = ROWS // (R * W)
    if gate == "lds":
        lds = 64
    if gate:
        defer = 1
    o = []
    e = o.append
    e(HEADER.rstrip())
    e(f"; @launch grid=({nwg},1,1) block=({64*W},1,1) lds={lds}")
    e('.amdgcn_target "amdgcn-amd-amdhsa--gfx950"')
    e(".text")
    e(f".globl {NAME}_kernel")
    e(".p2align 8")
    e(f".type {NAME}_kernel,@function")
    e(f"{NAME}_kernel:")
    e("    s_load_dwordx2 s[4:5], s[0:1], 0")
    e("    s_load_dwordx2 s[8:9], s[0:1], 8")
    e("    s_load_dwordx2 s[12:13], s[0:1], 16")
    if pf:
        e("    s_getpc_b64 s[30:31]")
        e("L_pc:")
        e(f"    v_lshlrev_b32 v5, {pf}, v0")
        e("    v_min_u32 v5, L_end-L_pc, v5")
        e("    global_load_dword v5, v5, s[30:31]")
    e("    s_mov_b32 s6, 0x1000000")
    e("    s_mov_b32 s7, 0x20000")
    e("    s_movk_i32 s10, 0x800")
    e("    s_mov_b32 s11, s7")
    e("    s_mov_b32 s14, s6")
    e("    s_mov_b32 s15, s7")
    e("    v_and_b32 v1, 63, v0")
    e("    v_lshlrev_b32 v1, 4, v1")
    e("    v_lshrrev_b32 v2, 6, v0")
    if mapping == "contig":
        wave_stride = R * ROWB
        rowoff = lambda r: r * ROWB
        e(f"    s_lshl_b32 s3, s2, {log2(W * R * ROWB)}")
    elif mapping == "wgrows":
        wave_stride = ROWB
        rowoff = lambda r: r * W * ROWB
        e(f"    s_lshl_b32 s3, s2, {log2(W * R * ROWB)}")
    elif mapping == "strided":
        wave_stride = ROWB
        rowoff = lambda r: r * nwg * W * ROWB
        e(f"    s_lshl_b32 s3, s2, {log2(W * ROWB)}")
        e(f"    s_cmp_ge_u32 s2, {nwg}")
        e("    s_cbranch_scc1 L_end")
    elif mapping[0] == "b":
        toks = mapping[1:]
        assert len(toks) == 13 and toks.count("r") == log2(R) and toks.count("w") == log2(W)
        pos = {k: [i for i, t in enumerate(toks) if t == k] for k in "rwgxc"}
        if not pos["g"]:
            pos["g"] = pos["x"] + pos["c"]

        def runs(p):
            out, i = [], 0
            while i < len(p):
                j = i
                while j + 1 < len(p) and p[j + 1] == p[j] + 1:
                    j += 1
                out.append((i, j - i + 1, p[i]))
                i = j + 1
            return out
        e(f"    s_cmp_ge_u32 s2, {nwg}")
        e("    s_cbranch_scc1 L_end")
        first = True
        for src, n, dst in runs(pos["g"]):
            t = "s3" if first else "s17"
            e(f"    s_bfe_u32 {t}, s2, {(n << 16) | src:#x}")
            e(f"    s_lshl_b32 {t}, {t}, {dst + 11}")
            if not first:
                e("    s_or_b32 s3, s3, s17")
            first = False
        e("    v_mov_b32 v2, v1")
        for src, n, dst in runs(pos["w"]):
            e(f"    v_bfe_u32 v3, v0, {6 + src}, {n}")
            e(f"    v_lshl_add_u32 v2, v3, {dst + 11}, v2")
        wave_stride = None
        rowoff = lambda r: sum(((r >> i) & 1) << (p + 11) for i, p in enumerate(pos["r"]))
    elif mapping.startswith("iod"):
        phase = int(mapping[3:])
        regb = 2 * R * W * ROWB
        e("    s_lshr_b32 s3, s2, 3")
        e("    s_lshl_b32 s3, s3, 2")
        e("    s_and_b32 s17, s2, 3")
        e("    s_or_b32 s3, s3, s17")
        e(f"    s_lshl_b32 s3, s3, {log2(regb)}")
        e("    s_lshr_b32 s17, s3, 19")
        e("    s_xor_b32 s17, s17, s2")
        if phase:
            e("    s_not_b32 s17, s17")
        e("    s_and_b32 s17, s17, 4")
        e("    s_lshl_b32 s17, s17, 11")
        e("    s_or_b32 s3, s3, s17")
        assert W >= 4
        if W > 4:
            e("    v_lshrrev_b32 v3, 2, v2")
            e("    v_and_b32 v2, 3, v2")
            e("    v_lshl_add_u32 v2, v3, 3, v2")
        wave_stride = ROWB
        rowoff = lambda r: r * (W // 4) * 16384
    if wave_stride:
        e(f"    v_lshl_add_u32 v2, v2, {log2(wave_stride)}, v1")
    e("    v_add_u32 v2, s3, v2")

    soff = {}
    if swz:
        e("    s_mov_b32 s19, 0")
        for rb, gb in zip(swz[1::2], swz[2::2]):
            e(f"    s_bfe_u32 s17, s2, {(1 << 16) | int(gb):#x}")
            e(f"    s_lshl_b32 s17, s17, {log2(rowoff(1 << int(rb)))}")
            e("    s_xor_b32 s19, s19, s17")
    for r in range(R):
        base = rowoff(r) & ~0xFFF
        if (base or swz) and base not in soff:
            soff[base] = 20 + len(soff)
            if swz:
                e(f"    s_xor_b32 s{soff[base]}, s19, {base:#x}")
            else:
                e(f"    s_mov_b32 s{soff[base]}, {base:#x}")

    def addr(r, half):
        off = rowoff(r) + half * 1024
        imm = off & 0xFFF
        base = off - imm
        so = f"s{soff[base]}" if base in soff else "0"
        return f"{so} offen" + (f" offset:{imm}" if imm else "")

    e("    s_mov_b32 s16, 0xffff0000")
    EPS, A, GF, T = 3, 4, 6, 22
    G = T + 2
    X = 40
    nv = X + 8 * nbuf
    xr = lambda r: X + 8 * (r % nbuf)
    ops = []
    held = []
    assert not defer or D == R

    def load(r):
        for h in range(2):
            e(f"    buffer_load_dwordx4 v[{xr(r)+4*h}:{xr(r)+4*h+3}], v2, s[4:7], {addr(r,h)} {ld}")
            ops.append(("L", r))

    def loadg():
        e(f"    buffer_load_dwordx4 v[{G}:{G+3}], v1, s[8:11], 0 offen {gld}")
        e(f"    buffer_load_dwordx4 v[{G+4}:{G+7}], v1, s[8:11], 0 offen offset:1024 {gld}")
        ops.extend([("L", 0), ("L", 0)])

    if gate == "last" or prio:
        e("    v_readfirstlane_b32 s28, v0")
    if prio:
        e(f"    s_cmp_ge_u32 s28, {64 * (W - 1)}")
        e("    s_cbranch_scc1 L_lowprio")
        e("    s_setprio 3")
        e("L_lowprio:")
    if gate == "lds":
        e("    v_mov_b32 v38, 0")
        e("    v_mov_b32 v39, 1")
        e("    ds_write_b32 v38, v38")
    e("    s_waitcnt lgkmcnt(0)")
    if gfirst:
        loadg()
    load(0)
    if not gfirst:
        loadg()
    for r in range(1, D):
        load(r)
        if gate == "lds" and r == 1:
            e("    s_barrier")
    e(f"    v_mov_b32 v{EPS}, 0x358637bd")

    for r in range(R):
        x = xr(r)
        a = A
        e(f"    v_mov_b32 v{a}, 0")
        last = max(i for i, op in enumerate(ops) if op == ("L", r))
        e(f"    s_waitcnt vmcnt({len(ops) - 1 - last})")
        if r + D < R:
            load(r + D)
        if gate == "last" and r == gj:
            e(f"    s_cmp_lt_u32 s28, {64 * (W - 1)}")
            e("    s_cbranch_scc1 L_nobar0")
            e("    s_barrier")
            e("L_nobar0:")
        if gate == "lds" and gj1 is None and r == gj:
            e("    ds_add_u32 v38, v39")
        if gate == "lds" and gj1 is not None:
            for par, j in ((0, gj), (1, gj1)):
                if r == j:
                    e("    s_bitcmp1_b32 s2, 0")
                    e(f"    s_cbranch_scc{1 - par} L_noarr{par}")
                    e("    ds_add_u32 v38, v39")
                    e(f"L_noarr{par}:")
        if r == barj:
            e("    s_barrier")
            for s in held:
                e(s)
                ops.append(("S", -1))
            held.clear()
        if r == 0:
            for d in range(8):
                if mode == "P":
                    e(f"    v_lshlrev_b32 v{GF+2*d}, 16, v{G+d}")
                else:
                    e(f"    v_and_b32 v{GF+2*d}, 0xffff, v{G+d}")
                e(f"    v_and_b32 v{GF+2*d+1}, s16, v{G+d}")
        for d in range(8):
            e(f"    v_dot2c_f32_bf16 v{a}, v{x+d}, v{x+d}")
        fill = []
        for d in range(8):
            if mode == "P":
                fill.append(f"    v_lshlrev_b32 v{T+2*d}, 16, v{x+d}")
                fill.append(f"    v_and_b32 v{T+2*d+1}, s16, v{x+d}")
            else:
                fill.append(f"    v_dot2_f32_bf16 v{T+2*d}, v{x+d}, v{GF+2*d}, 0")
                fill.append(f"    v_dot2_f32_bf16 v{T+2*d+1}, v{x+d}, v{GF+2*d+1}, 0")
        if mode == "P":
            for d in range(8):
                fill.append(f"    v_pk_mul_f32 v[{T+2*d}:{T+2*d+1}], v[{T+2*d}:{T+2*d+1}], v[{GF+2*d}:{GF+2*d+1}]")

        def pad(n):
            for _ in range(n):
                e(fill.pop(0) if fill else "    s_nop 0")

        pad(3)
        for ctl in ("quad_perm:[1,0,3,2] row_mask:0xf", "quad_perm:[2,3,0,1] row_mask:0xf",
                    "row_half_mirror row_mask:0xf", "row_mirror row_mask:0xf",
                    "row_bcast:15 row_mask:0xa", "row_bcast:31 row_mask:0xc"):
            e(f"    v_add_f32_dpp v{a}, v{a}, v{a} {ctl} bank_mask:0xf")
            if "bcast:31" not in ctl:
                pad(2)
        e(f"    v_fmamk_f32 v{a}, v{a}, 0x3a800000, v{EPS}")
        e(f"    v_rsq_f32 v{a}, v{a}")
        pad(1)
        e(f"    v_readlane_b32 s18, v{a}, 63")
        pad(max(3, len(fill)))
        if mode == "D":
            e("    s_nop 1")
        pol = st if (st2 is None or r < split) else st2
        for h in range(2):
            for d in range(4 * h, 4 * h + 4):
                e(f"    v_pk_mul_f32 v[{T+2*d}:{T+2*d+1}], v[{T+2*d}:{T+2*d+1}], s[18:19] op_sel_hi:[1,0]")
            for d in range(4 * h, 4 * h + 4):
                e(f"    v_cvt_pk_bf16_f32 v{x+d}, v{T+2*d}, v{T+2*d+1}")
            s = f"    buffer_store_dwordx4 v[{x+4*h}:{x+4*h+3}], v2, s[12:15], {addr(r,h)} {pol}"
            if defer or r < barj:
                held.append(s)
            else:
                e(s)
                ops.append(("S", r))
    if gate == "last":
        e(f"    s_cmp_ge_u32 s28, {64 * (W - 1)}")
        e("    s_cbranch_scc1 L_nobar1")
        e("    s_barrier")
        e("L_nobar1:")
    if gate == "lds":
        for par, j in ((0, gj), (1, gj1)):
            if j == -1:
                e("    s_bitcmp1_b32 s2, 0")
                e(f"    s_cbranch_scc{par} L_nopoll")
        e("L_poll:")
        e("    ds_read_b32 v39, v38")
        e("    s_waitcnt lgkmcnt(0)")
        e("    v_readfirstlane_b32 s28, v39")
        e("    s_nop 0")
        e(f"    s_cmp_lt_u32 s28, {64 * (need or W)}")
        e("    s_cbranch_scc1 L_poll")
        e("L_nopoll:")
    if bar:
        e("    s_barrier")
    for s in held:
        if not nost:
            e(s)
    e("L_end:")
    e("    s_endpgm")
    e('.section .rodata,"a"')
    e(".p2align 6")
    e(f".amdhsa_kernel {NAME}_kernel")
    e(f"  .amdhsa_next_free_vgpr {nv}")
    e("  .amdhsa_next_free_sgpr 40")
    e(f"  .amdhsa_accum_offset {(nv + 3) // 4 * 4}")
    e("  .amdhsa_group_segment_fixed_size 0")
    e("  .amdhsa_kernarg_size 40")
    e("  .amdhsa_user_sgpr_count 2")
    e("  .amdhsa_user_sgpr_kernarg_segment_ptr 1")
    e("  .amdhsa_system_sgpr_workgroup_id_x 1")
    e("  .amdhsa_float_denorm_mode_32 3")
    e(".end_amdhsa_kernel")
    if nocomp:
        w0 = next(i for i, l in enumerate(o) if "s_waitcnt vmcnt" in l)
        o = o[:w0] + [l for l in o[w0:] if not l.strip().startswith("v_")]
        if nocomp == 2:
            o = [l for l in o if "buffer_load" not in l]
    return "\n".join(l.rstrip() for l in o) + "\n"


def parse(spec):
    kw = {}
    for item in spec.split(","):
        k, v = item.split("=")
        kw[k] = int(v) if v.lstrip("-").isdigit() else v.replace("+", " ")
    return kw


if __name__ == "__main__":
    for spec in sys.argv[1:]:
        nm = "var/p_" + spec.replace("=", "").replace(",", "_").replace("+", "") + ".s"
        open("code/" + nm, "w").write(gen(**parse(spec)))
        print(nm)
```

```python
import sys
sys.path.insert(0, "gen")
from gen import HEADER, NAME, ROWS, ROWB, log2
from gen2 import parse


def gen(R=8, ld="nt", st="nt", pf=1, gate=0, gj=0, gj1=None, gpos=8, bpos=0, pad=0, mode="P", drop=None, dn=2, tlb=0, sj=None, st2=None, split=0, gld=""):
    W = 32 // R
    nwg = 256
    lds = 64 if gate else 0
    o = []
    e = o.append
    e(HEADER.rstrip())
    e(f"; @launch grid=({nwg},1,1) block=({64*W},1,1) lds={lds}")
    e('.amdgcn_target "amdgcn-amd-amdhsa--gfx950"')
    e(".text")
    e(f".globl {NAME}_kernel")
    e(".p2align 8")
    e(f".type {NAME}_kernel,@function")
    e(f"{NAME}_kernel:")
    e("    s_load_dwordx4 s[4:7], s[0:1], 0")
    if tlb:
        e("    s_load_dwordx2 s[8:9], s[0:1], 16")
    e(f"    s_cmpk_ge_u32 s2, {nwg}")
    e("    s_cbranch_scc1 L_end")
    for _ in range(pad):
        e("    s_nop 0")
    e("    s_lshl_b32 s3, s2, 14")
    e("    s_bitset1_b32 s3, 12")
    if R == 8:
        if pf == 2:
            e("    s_getpc_b64 s[10:11]")
            e("    v_mov_b32 v1, 0")
            e("    v_lshl_add_u64 v[4:5], v[0:1], 4, s[10:11]")
            e("    global_load_dword v5, v[4:5], off")
        e("    v_mul_u32_u24 v1, 0x10010, v0")
        if pf == 1:
            e("    s_getpc_b64 s[10:11]")
            e("    v_lshlrev_b32 v5, 4, v0")
            e("    global_load_dword v5, v5, s[10:11]")
        e("    v_and_b32 v2, 0xc003f0, v1")
        e("    v_or_b32 v2, s3, v2")
    else:
        mul, mask = {4: (0x8080, 0xC02000), 2: (0x4040, 0xC03000)}[R]
        if R == 2:
            o.pop()
        e("    v_and_b32 v1, 63, v0")
        e("    v_xor_b32 v2, v1, v0")
        e(f"    v_mul_u32_u24 v2, {mul:#x}, v2")
        e(f"    v_and_b32 v2, {mask:#x}, v2")
        e("    v_lshl_or_b32 v1, v1, 4, s3")
        e("    v_or_b32 v2, v1, v2")
        if pf:
            e("    s_getpc_b64 s[10:11]")
            e("    v_lshlrev_b32 v5, 2, v0")
            e("    global_load_dword v5, v5, s[10:11]")
    if drop is not None:
        e("    v_readfirstlane_b32 s20, v0")
        e("    s_and_b32 s21, s2, 1")
        e(f"    s_cmp_eq_u32 s21, {drop}")
        e("    s_cselect_b32 s20, s20, 0x1000")
    Z, ONE = 38, 39
    if gate:
        e(f"    v_mov_b32 v{Z}, 0")
        e(f"    ds_write_b32 v{Z}, v{Z}")
    e("    s_waitcnt lgkmcnt(0)")

    EPS, A, GF, T = 0, 4, 6, 22
    G = T + 2
    X = 40
    nv = X + 8 * R
    bias = 0 if R == 2 else 4096

    def va(r, h):
        off = r * ROWB + h * 1024
        return ("v2" if off < 8192 else "v3"), (off % 8192) - bias

    ops = []
    n = 0

    def loadg():
        e("    v_and_b32 v1, 0x3f0, v2")
        e(f"    global_load_dwordx4 v[{G}:{G+3}], v1, s[6:7] {gld}")
        e(f"    global_load_dwordx4 v[{G+4}:{G+7}], v1, s[6:7] offset:1024 {gld}")
        ops.extend(["g", "g"])
        if tlb:
            e("    v_xor_b32 v1, v1, v2")
            e("    global_load_dword v5, v1, s[8:9] nt")
            ops.append("t")

    if gpos == 0:
        loadg()
    for r in range(R):
        for h in range(2):
            if drop is not None and n == 0:
                e(f"    s_cmpk_lt_u32 s20, {64 * dn}")
                e("    s_cbranch_scc1 L_skipld")
            if drop is not None and n == 2:
                e("L_skipld:")
            if gate and n == bpos:
                e("    s_barrier")
            if n == 8:
                e("    v_add_u32 v3, 0x2000, v2")
            v, off = va(r, h)
            e(f"    global_load_dwordx4 v[{X+8*r+4*h}:{X+8*r+4*h+3}], {v}, s[4:5] offset:{off} {ld}")
            ops.append(r)
            n += 1
            if n == min(gpos, 2 * R):
                loadg()
    if not tlb:
        e("    s_load_dwordx2 s[8:9], s[0:1], 16")
    e("    s_mov_b32 s16, 0xffff0000")
    e(f"    v_mov_b32 v{EPS}, 0x358637bd")
    if gate:
        e(f"    v_mov_b32 v{ONE}, 1")
    done = -1
    pol = lambda q: st if (st2 is None or q < split) else st2

    def store(q):
        for h in range(2):
            v, off = va(q, h)
            e(f"    global_store_dwordx4 {v}, v[{X+8*q+4*h}:{X+8*q+4*h+3}], s[8:9] offset:{off} {pol(q)}")
            ops.append("s")

    for r in range(R):
        x = X + 8 * r
        a = A
        e(f"    v_mov_b32 v{a}, 0")
        last = max(i for i, op in enumerate(ops) if op == r or op == "g")
        if last > done:
            e(f"    s_waitcnt vmcnt({len(ops) - 1 - last})")
            done = last
        if gate:
            if gj1 is None:
                if r == gj:
                    e(f"    ds_add_u32 v{Z}, v{ONE}")
            else:
                for par, j in ((0, gj), (1, gj1)):
                    if r == j:
                        e("    s_bitcmp1_b32 s2, 0")
                        e(f"    s_cbranch_scc{1 - par} L_noarr{par}")
                        e(f"    ds_add_u32 v{Z}, v{ONE}")
                        e(f"L_noarr{par}:")
        if sj is not None and r == sj:
            e("    s_waitcnt lgkmcnt(0)")
            for q in range(r):
                store(q)
        if r == 0:
            for d in range(8):
                if mode == "P":
                    e(f"    v_lshlrev_b32 v{GF+2*d}, 16, v{G+d}")
                else:
                    e(f"    v_and_b32 v{GF+2*d}, 0xffff, v{G+d}")
                e(f"    v_and_b32 v{GF+2*d+1}, s16, v{G+d}")
        for d in range(8):
            e(f"    v_dot2c_f32_bf16 v{a}, v{x+d}, v{x+d}")
        fill = []
        for d in range(8):
            if mode == "P":
                fill.append(f"    v_lshlrev_b32 v{T+2*d}, 16, v{x+d}")
                fill.append(f"    v_and_b32 v{T+2*d+1}, s16, v{x+d}")
            else:
                fill.append(f"    v_dot2_f32_bf16 v{T+2*d}, v{x+d}, v{GF+2*d}, 0")
                fill.append(f"    v_dot2_f32_bf16 v{T+2*d+1}, v{x+d}, v{GF+2*d+1}, 0")
        for d in range(8 if mode == "P" else 0):
            fill.append(f"    v_pk_mul_f32 v[{T+2*d}:{T+2*d+1}], v[{T+2*d}:{T+2*d+1}], v[{GF+2*d}:{GF+2*d+1}]")

        def padn(k):
            for _ in range(k):
                e(fill.pop(0) if fill else "    s_nop 0")

        padn(3)
        for ctl in ("quad_perm:[1,0,3,2] row_mask:0xf", "quad_perm:[2,3,0,1] row_mask:0xf",
                    "row_half_mirror row_mask:0xf", "row_mirror row_mask:0xf",
                    "row_bcast:15 row_mask:0xa", "row_bcast:31 row_mask:0xc"):
            e(f"    v_add_f32_dpp v{a}, v{a}, v{a} {ctl} bank_mask:0xf")
            if "bcast:31" not in ctl:
                padn(2)
        e(f"    v_fmamk_f32 v{a}, v{a}, 0x3a800000, v{EPS}")
        e(f"    v_rsq_f32 v{a}, v{a}")
        padn(1)
        e(f"    v_readlane_b32 s18, v{a}, 63")
        padn(max(2, len(fill)))
        for d in range(8):
            e(f"    v_pk_mul_f32 v[{T+2*d}:{T+2*d+1}], v[{T+2*d}:{T+2*d+1}], s[18:19] op_sel_hi:[1,0]")
        for d in range(8):
            e(f"    v_cvt_pk_bf16_f32 v{x+d}, v{T+2*d}, v{T+2*d+1}")
        if sj is not None and r >= sj:
            store(r)
    if gate:
        for par, j in ((0, gj), (1, gj1)):
            if j == -1:
                e("    s_bitcmp1_b32 s2, 0")
                e(f"    s_cbranch_scc{par} L_nopoll")
        e("L_poll:")
        e(f"    ds_read_b32 v{ONE}, v{Z}")
        e("    s_waitcnt lgkmcnt(0)")
        e(f"    v_readfirstlane_b32 s28, v{ONE}")
        e("    s_nop 0")
        e(f"    s_cmpk_lt_u32 s28, {64 * W}")
        e("    s_cbranch_scc1 L_poll")
        e("L_nopoll:")
    e("    s_waitcnt lgkmcnt(0)")
    for r in range(R if sj is None else 0):
        for h in range(2):
            if drop is not None and r == 0 and h == 0:
                e(f"    s_cmpk_lt_u32 s20, {64 * dn}")
                e("    s_cbranch_scc1 L_skipst")
            if drop is not None and r == 1 and h == 0:
                e("L_skipst:")
            v, off = va(r, h)
            e(f"    global_store_dwordx4 {v}, v[{X+8*r+4*h}:{X+8*r+4*h+3}], s[8:9] offset:{off} {pol(r)}")
    e("L_end:")
    e("    s_endpgm")
    if pf:
        e(f"    .fill ({NAME}_kernel + 4224 - .) / 4, 4, 0xbf810000")
    e('.section .rodata,"a"')
    e(".p2align 6")
    e(f".amdhsa_kernel {NAME}_kernel")
    e(f"  .amdhsa_next_free_vgpr {nv}")
    e("  .amdhsa_next_free_sgpr 32")
    e(f"  .amdhsa_accum_offset {(nv + 3) // 4 * 4}")
    e("  .amdhsa_group_segment_fixed_size 0")
    e("  .amdhsa_kernarg_size 40")
    e("  .amdhsa_user_sgpr_count 2")
    e("  .amdhsa_user_sgpr_kernarg_segment_ptr 1")
    e("  .amdhsa_system_sgpr_workgroup_id_x 1")
    e("  .amdhsa_float_denorm_mode_32 3")
    e(".end_amdhsa_kernel")
    return "\n".join(l.rstrip() for l in o) + "\n"


if __name__ == "__main__":
    import gen2
    for spec in sys.argv[1:]:
        mod = gen2.gen if spec.startswith("2:") else gen
        sp = spec[2:] if spec.startswith("2:") else spec
        nm = "var/q_" + spec.replace("=", "").replace(",", "_").replace("+", "").replace(":", "_") + ".s"
        open("code/" + nm, "w").write(mod(**parse(sp)))
        print(nm)
```

```python
import sys
sys.path.insert(0, "gen")
from gen import HEADER, NAME, ROWS, ROWB, log2
from gen2 import parse


def gen(R=8, ld="nt", st="sc1 nt", pf=1, gate=0, gj=0, gj1=None, gpos=8, bpos=0, pad=0, mode="P", drop=None, dn=2, tlb=0, sj=None, st2=None, split=0, gld="", D=None, lb="", burst=1, mp=None, swz="", sto="", xr=""):
    W = 32 // R
    nwg = 256
    lds = 64 if gate else 0
    o = []
    e = o.append
    e(HEADER.rstrip())
    e(f"; @launch grid=({nwg},1,1) block=({64*W},1,1) lds={lds}")
    e('.amdgcn_target "amdgcn-amd-amdhsa--gfx950"')
    e(".text")
    e(f".globl {NAME}_kernel")
    e(".p2align 8")
    e(f".type {NAME}_kernel,@function")
    e(f"{NAME}_kernel:")
    e("    s_load_dwordx4 s[4:7], s[0:1], 0")
    if tlb:
        e("    s_load_dwordx2 s[8:9], s[0:1], 16")
    e(f"    s_cmpk_ge_u32 s2, {nwg}")
    e("    s_cbranch_scc1 L_end")
    for _ in range(pad):
        e("    s_nop 0")
    e("    s_lshl_b32 s3, s2, 14")
    e("    s_bitset1_b32 s3, 12")
    if R == 8:
        if pf == 2:
            e("    s_getpc_b64 s[10:11]")
            e("    v_mov_b32 v1, 0")
            e("    v_lshl_add_u64 v[4:5], v[0:1], 4, s[10:11]")
            e("    global_load_dword v5, v[4:5], off")
        e("    v_mul_u32_u24 v1, 0x10010, v0")
        if pf == 1:
            e("    s_getpc_b64 s[10:11]")
            e("    v_lshlrev_b32 v5, 4, v0")
            e("    global_load_dword v5, v5, s[10:11]")
        e("    v_and_b32 v2, 0xc003f0, v1")
        e("    v_or_b32 v2, s3, v2")
    else:
        mul, mask = {4: (0x8080, 0xC02000), 2: (0x4040, 0xC03000)}[R]
        if R == 2:
            o.pop()
        e("    v_and_b32 v1, 63, v0")
        e("    v_xor_b32 v2, v1, v0")
        e(f"    v_mul_u32_u24 v2, {mul:#x}, v2")
        e(f"    v_and_b32 v2, {mask:#x}, v2")
        e("    v_lshl_or_b32 v1, v1, 4, s3")
        e("    v_or_b32 v2, v1, v2")
        if pf:
            e("    s_getpc_b64 s[10:11]")
            e("    v_lshlrev_b32 v5, 2, v0")
            e("    global_load_dword v5, v5, s[10:11]")
    if mp:
        pos = {k: [i for i, t in enumerate(mp) if t == k] for k in "rwxc"}
        assert len(mp) == 13

        def runs(p):
            out, i = [], 0
            while i < len(p):
                j = i
                while j + 1 < len(p) and p[j + 1] == p[j] + 1:
                    j += 1
                out.append((i, j - i + 1, p[i]))
                i = j + 1
            return out
        e("    s_mov_b32 s3, 0")
        gp = pos["x"] + pos["c"] or [mp.index(str(i)) for i in range(8)]
        for src, n, dst in runs(gp):
            e(f"    s_bfe_u32 s17, s2, {(n << 16) | src:#x}")
            e(f"    s_lshl_b32 s17, s17, {dst + 11}")
            e("    s_or_b32 s3, s3, s17")
        for rb, gb in zip(swz[1::2], swz[2::2]):
            e(f"    s_bfe_u32 s17, s2, {(1 << 16) | int(gb):#x}")
            e(f"    s_lshl_b32 s17, s17, {pos['r'][int(rb)] + 11}")
            e("    s_xor_b32 s3, s3, s17")
        for p, gb in zip(xr[1::2], xr[2::2]):
            e(f"    s_bfe_u32 s17, s2, {(1 << 16) | int(gb):#x}")
            e(f"    s_lshl_b32 s17, s17, {int(p, 16) + 11}")
            e("    s_xor_b32 s3, s3, s17")
        e("    v_and_b32 v2, 0x3f0, v2")
        e("    v_or_b32 v2, s3, v2")
        for src, n, dst in runs(pos["w"]):
            e(f"    v_bfe_u32 v3, v0, {6 + src}, {n}")
            e(f"    v_lshl_or_b32 v2, v3, {dst + 11}, v2")
    if drop is not None:
        e("    v_readfirstlane_b32 s20, v0")
        e("    s_and_b32 s21, s2, 1")
        e(f"    s_cmp_eq_u32 s21, {drop}")
        e("    s_cselect_b32 s20, s20, 0x1000")
    Z, ONE = 38, 39
    if gate:
        e(f"    v_mov_b32 v{Z}, 0")
        e(f"    ds_write_b32 v{Z}, v{Z}")
    e("    s_waitcnt lgkmcnt(0)")

    EPS, A, GF, T = 0, 4, 6, 22
    G = T + 2
    X = 40
    nv = X + 8 * R + (8 if mp else 0)
    bias = 0 if R == 2 else 4096

    areg = {0: "v2"}

    def va(r, h):
        if mp:
            off = sum(((r >> i) & 1) << (p + 11) for i, p in enumerate(pos["r"])) + h * 1024
            base = off & ~0xFFF
            if base not in areg:
                areg[base] = f"v{X + 8 * R + len(areg) - 1}"
                e(f"    v_xor_b32 {areg[base]}, {base:#x}, v2")
            return areg[base], off - base
        off = r * ROWB + h * 1024
        return ("v2" if off < 8192 else "v3"), (off % 8192) - bias

    ops = []
    n = 0

    def loadg():
        e("    v_and_b32 v1, 0x3f0, v2")
        e(f"    global_load_dwordx4 v[{G}:{G+3}], v1, s[6:7] {gld}")
        e(f"    global_load_dwordx4 v[{G+4}:{G+7}], v1, s[6:7] offset:1024 {gld}")
        ops.extend(["g", "g"])
        if tlb:
            e("    v_xor_b32 v1, v1, v2")
            e("    global_load_dword v5, v1, s[8:9] nt")
            ops.append("t")

    if gpos == 0:
        loadg()
    bars = [int(c, 36) for c in str(lb).lstrip("b")]
    issued = [0]

    def load(r):
        for h in range(2):
            n = issued[0]
            if drop is not None and n == 0:
                e(f"    s_cmpk_lt_u32 s20, {64 * dn}")
                e("    s_cbranch_scc1 L_skipld")
            if drop is not None and n == 2:
                e("L_skipld:")
            if (gate and n == bpos) or n in bars:
                e("    s_barrier")
            if n == 8 and not mp:
                e("    v_add_u32 v3, 0x2000, v2")
            v, off = va(r, h)
            e(f"    global_load_dwordx4 v[{X+8*r+4*h}:{X+8*r+4*h+3}], {v}, s[4:5] offset:{off} {ld}")
            ops.append(r)
            issued[0] += 1
            if issued[0] == min(gpos, 2 * R):
                loadg()

    D = D or R
    for r in range(D):
        load(r)
    if not tlb:
        e("    s_load_dwordx2 s[8:9], s[0:1], 16")
    e("    s_mov_b32 s16, 0xffff0000")
    e(f"    v_mov_b32 v{EPS}, 0x358637bd")
    if gate:
        e(f"    v_mov_b32 v{ONE}, 1")
    done = -1
    pol = lambda q: st if (st2 is None or q < split) else st2

    def store(q):
        for h in range(2):
            v, off = va(q, h)
            e(f"    global_store_dwordx4 {v}, v[{X+8*q+4*h}:{X+8*q+4*h+3}], s[8:9] offset:{off} {pol(q)}")
            ops.append("s")

    for r in range(R):
        x = X + 8 * r
        a = A
        e(f"    v_mov_b32 v{a}, 0")
        last = max(i for i, op in enumerate(ops) if op == r or op == "g")
        if last > done:
            e(f"    s_waitcnt vmcnt({len(ops) - 1 - last})")
            done = last
        for _ in range(burst):
            if issued[0] < 2 * R:
                load(issued[0] // 2)
        if gate:
            if gj1 is None:
                if r == gj:
                    e(f"    ds_add_u32 v{Z}, v{ONE}")
            else:
                for par, j in ((0, gj), (1, gj1)):
                    if r == j:
                        e("    s_bitcmp1_b32 s2, 0")
                        e(f"    s_cbranch_scc{1 - par} L_noarr{par}")
                        e(f"    ds_add_u32 v{Z}, v{ONE}")
                        e(f"L_noarr{par}:")
        if sj is not None and r == sj:
            e("    s_waitcnt lgkmcnt(0)")
            for q in range(r):
                store(q)
        if r == 0:
            for d in range(8):
                if mode == "P":
                    e(f"    v_lshlrev_b32 v{GF+2*d}, 16, v{G+d}")
                else:
                    e(f"    v_and_b32 v{GF+2*d}, 0xffff, v{G+d}")
                e(f"    v_and_b32 v{GF+2*d+1}, s16, v{G+d}")
        for d in range(8):
            e(f"    v_dot2c_f32_bf16 v{a}, v{x+d}, v{x+d}")
        fill = []
        for d in range(8):
            if mode == "P":
                fill.append(f"    v_lshlrev_b32 v{T+2*d}, 16, v{x+d}")
                fill.append(f"    v_and_b32 v{T+2*d+1}, s16, v{x+d}")
            else:
                fill.append(f"    v_dot2_f32_bf16 v{T+2*d}, v{x+d}, v{GF+2*d}, 0")
                fill.append(f"    v_dot2_f32_bf16 v{T+2*d+1}, v{x+d}, v{GF+2*d+1}, 0")
        for d in range(8 if mode == "P" else 0):
            fill.append(f"    v_pk_mul_f32 v[{T+2*d}:{T+2*d+1}], v[{T+2*d}:{T+2*d+1}], v[{GF+2*d}:{GF+2*d+1}]")

        def padn(k):
            for _ in range(k):
                e(fill.pop(0) if fill else "    s_nop 0")

        padn(3)
        for ctl in ("quad_perm:[1,0,3,2] row_mask:0xf", "quad_perm:[2,3,0,1] row_mask:0xf",
                    "row_half_mirror row_mask:0xf", "row_mirror row_mask:0xf",
                    "row_bcast:15 row_mask:0xa", "row_bcast:31 row_mask:0xc"):
            e(f"    v_add_f32_dpp v{a}, v{a}, v{a} {ctl} bank_mask:0xf")
            if "bcast:31" not in ctl:
                padn(2)
        e(f"    v_fmamk_f32 v{a}, v{a}, 0x3a800000, v{EPS}")
        e(f"    v_rsq_f32 v{a}, v{a}")
        padn(1)
        e(f"    v_readlane_b32 s18, v{a}, 63")
        padn(max(2, len(fill)))
        for d in range(8):
            e(f"    v_pk_mul_f32 v[{T+2*d}:{T+2*d+1}], v[{T+2*d}:{T+2*d+1}], s[18:19] op_sel_hi:[1,0]")
        for d in range(8):
            e(f"    v_cvt_pk_bf16_f32 v{x+d}, v{T+2*d}, v{T+2*d+1}")
        if sj is not None and r >= sj:
            store(r)
    if gate:
        for par, j in ((0, gj), (1, gj1)):
            if j == -1:
                e("    s_bitcmp1_b32 s2, 0")
                e(f"    s_cbranch_scc{par} L_nopoll")
        e("L_poll:")
        e(f"    ds_read_b32 v{ONE}, v{Z}")
        e("    s_waitcnt lgkmcnt(0)")
        e(f"    v_readfirstlane_b32 s28, v{ONE}")
        e("    s_nop 0")
        e(f"    s_cmpk_lt_u32 s28, {64 * W}")
        e("    s_cbranch_scc1 L_poll")
        e("L_nopoll:")
    e("    s_waitcnt lgkmcnt(0)")
    for r in ([int(c) for c in sto[1:]] if sto else range(R if sj is None else 0)):
        for h in range(2):
            if drop is not None and r == 0 and h == 0:
                e(f"    s_cmpk_lt_u32 s20, {64 * dn}")
                e("    s_cbranch_scc1 L_skipst")
            if drop is not None and r == 1 and h == 0:
                e("L_skipst:")
            v, off = va(r, h)
            e(f"    global_store_dwordx4 {v}, v[{X+8*r+4*h}:{X+8*r+4*h+3}], s[8:9] offset:{off} {pol(r)}")
    e("L_end:")
    e("    s_endpgm")
    if pf:
        e(f"    .fill ({NAME}_kernel + 4224 - .) / 4, 4, 0xbf810000")
    e('.section .rodata,"a"')
    e(".p2align 6")
    e(f".amdhsa_kernel {NAME}_kernel")
    e(f"  .amdhsa_next_free_vgpr {nv}")
    e("  .amdhsa_next_free_sgpr 32")
    e(f"  .amdhsa_accum_offset {(nv + 3) // 4 * 4}")
    e("  .amdhsa_group_segment_fixed_size 0")
    e("  .amdhsa_kernarg_size 40")
    e("  .amdhsa_user_sgpr_count 2")
    e("  .amdhsa_user_sgpr_kernarg_segment_ptr 1")
    e("  .amdhsa_system_sgpr_workgroup_id_x 1")
    e("  .amdhsa_float_denorm_mode_32 3")
    e(".end_amdhsa_kernel")
    return "\n".join(l.rstrip() for l in o) + "\n"


if __name__ == "__main__":
    import gen2
    for spec in sys.argv[1:]:
        mod = gen2.gen if spec.startswith("2:") else gen
        sp = spec[2:] if spec.startswith("2:") else spec
        nm = "var/q_" + spec.replace("=", "").replace(",", "_").replace("+", "").replace(":", "_") + ".s"
        open("code/" + nm, "w").write(mod(**parse(sp)))
        print(nm)
```

```python
import sys
sys.path.insert(0, "gen")
from gen import HEADER, NAME, ROWB
from gen2 import parse


def gen(R=8, ld="nt", st="nt", gpos=4, sj=None, align=1, exact=0, pf=0):
    W = 32 // R
    nwg = 256
    o = []
    e = o.append
    e(HEADER.rstrip())
    e(f"; @launch grid=({nwg},1,1) block=({64*W},1,1) lds=0")
    e('.amdgcn_target "amdgcn-amd-amdhsa--gfx950"')
    e(".text")
    e(f".globl {NAME}_kernel")
    e(".p2align 8")
    e(f".type {NAME}_kernel,@function")
    e(f"{NAME}_kernel:")
    e("    s_load_dwordx4 s[4:7], s[0:1], 0")
    e(f"    s_cmpk_ge_u32 s2, {nwg}")
    e("    s_cbranch_scc1 L_end")
    e("    s_lshl_b32 s3, s2, 14")
    e("    s_bitset1_b32 s3, 12")
    if R == 8:
        e("    v_mul_u32_u24 v1, 0x10010, v0")
        e("    v_and_b32 v2, 0xc003f0, v1")
        e("    v_or_b32 v2, s3, v2")
    else:
        e("    v_and_b32 v1, 63, v0")
        e("    v_xor_b32 v2, v1, v0")
        e("    v_mul_u32_u24 v2, 0x8080, v2")
        e("    v_and_b32 v2, 0xc02000, v2")
        e("    v_lshl_or_b32 v1, v1, 4, s3")
        e("    v_or_b32 v2, v1, v2")
    e("    v_and_b32 v1, 0x3f0, v1")
    if pf:
        e("    s_getpc_b64 s[10:11]")
        e("    global_load_dword v5, v1, s[10:11] offset:64")
    e("    s_waitcnt lgkmcnt(0)")

    EPS, A, GF, T = 0, 4, 6, 22
    G = T + 2
    X = 40
    nv = X + 8 * R

    def va(r, h):
        off = r * ROWB + h * 1024
        return ("v2" if off < 8192 else "v3"), (off % 8192) - 4096

    ops = []

    def loadg():
        e(f"    global_load_dwordx4 v[{G}:{G+3}], v1, s[6:7]")
        e(f"    global_load_dwordx4 v[{G+4}:{G+7}], v1, s[6:7] offset:1024")
        ops.extend(["g", "g"])

    def store(q):
        for h in range(2):
            v, off = va(q, h)
            e(f"    global_store_dwordx4 {v}, v[{X+8*q+4*h}:{X+8*q+4*h+3}], s[8:9] offset:{off} {st}")
            ops.append("s")

    if gpos == 0:
        loadg()
    n = 0
    for r in range(R):
        for h in range(2):
            if n == 8:
                e("    v_add_u32 v3, 0x2000, v2")
            v, off = va(r, h)
            e(f"    global_load_dwordx4 v[{X+8*r+4*h}:{X+8*r+4*h+3}], {v}, s[4:5] offset:{off} {ld}")
            ops.append(r)
            n += 1
            if n == gpos:
                loadg()
    e("    s_load_dwordx2 s[8:9], s[0:1], 16")
    e("    s_mov_b32 s16, 0xffff0000")
    e(f"    v_mov_b32 v{EPS}, 0x358637bd")
    e("    s_mov_b32 s20, 0")
    done = max(i for i, op in enumerate(ops) if op in (0, "g"))
    e(f"    s_waitcnt vmcnt({len(ops) - 1 - done})")
    for d in range(8):
        e(f"    v_lshlrev_b32 v{GF+2*d}, 16, v{G+d}")
        e(f"    v_and_b32 v{GF+2*d+1}, s16, v{G+d}")
    e("    s_waitcnt lgkmcnt(0)")
    if align:
        e("    s_branch L_calls")
        e(".p2align 7")
        e("L_calls:")
    for r in range(R):
        last = max(i for i, op in enumerate(ops) if op == r)
        if last > done:
            e(f"    s_waitcnt vmcnt({len(ops) - 1 - last})")
            done = last
        if sj is not None and r == sj:
            for q in range(r):
                store(q)
        e("    s_call_b64 s[22:23], L_row")
        if sj is not None and r >= sj:
            store(r)
    if sj is None:
        for r in range(R):
            store(r)
    e("L_end:")
    e("    s_endpgm")

    a = A
    e("L_row:")
    e(f"    v_mov_b32 v{a}, 0")
    e("    s_set_gpr_idx_on s20, gpr_idx(SRC0,SRC1)")
    for d in range(8):
        e(f"    v_dot2c_f32_bf16 v{a}, v{X+d}, v{X+d}")
    for d in range(8):
        e(f"    v_lshlrev_b32 v{T+2*d}, 16, v{X+d}")
        e(f"    v_and_b32 v{T+2*d+1}, s16, v{X+d}")
    e("    s_set_gpr_idx_off")
    fill = []
    if exact < 2:
        fill = [f"    v_pk_mul_f32 v[{T+2*d}:{T+2*d+1}], v[{T+2*d}:{T+2*d+1}], v[{GF+2*d}:{GF+2*d+1}]" for d in range(8)]

    def padn(k):
        while k and fill:
            e(fill.pop(0))
            k -= 1
        if k:
            e(f"    s_nop {k - 1}")

    for ctl in ("quad_perm:[1,0,3,2] row_mask:0xf", "quad_perm:[2,3,0,1] row_mask:0xf",
                "row_half_mirror row_mask:0xf", "row_mirror row_mask:0xf",
                "row_bcast:15 row_mask:0xa", "row_bcast:31 row_mask:0xc"):
        e(f"    v_add_f32_dpp v{a}, v{a}, v{a} {ctl} bank_mask:0xf")
        if "bcast:31" not in ctl:
            padn(2)
    if exact:
        e(f"    v_cvt_pk_bf16_f32 v{a}, 0, v{a}")
        e(f"    v_fmamk_f32 v{a}, v{a}, 0x3a800000, v{EPS}")
        e(f"    v_cvt_pk_bf16_f32 v{a}, 0, v{a}")
        e(f"    v_sqrt_f32 v{a}, v{a}")
        e("    s_nop 0")
        e(f"    v_cvt_pk_bf16_f32 v{a}, 0, v{a}")
        e(f"    v_rcp_f32 v{a}, v{a}")
    else:
        e(f"    v_fmamk_f32 v{a}, v{a}, 0x3a800000, v{EPS}")
        e(f"    v_rsq_f32 v{a}, v{a}")
    padn(1)
    e(f"    v_readlane_b32 s18, v{a}, 63")
    padn(2)
    for d in range(8):
        e(f"    v_pk_mul_f32 v[{T+2*d}:{T+2*d+1}], v[{T+2*d}:{T+2*d+1}], s[18:19] op_sel_hi:[1,0]")
    if exact >= 2:
        for d in range(16):
            e(f"    v_cvt_pk_bf16_f32 v{T+d}, 0, v{T+d}")
        for d in range(8):
            e(f"    v_pk_mul_f32 v[{T+2*d}:{T+2*d+1}], v[{T+2*d}:{T+2*d+1}], v[{GF+2*d}:{GF+2*d+1}]")
    e("    s_set_gpr_idx_on s20, gpr_idx(DST)")
    for d in range(8):
        e(f"    v_cvt_pk_bf16_f32 v{X+d}, v{T+2*d}, v{T+2*d+1}")
    e("    s_set_gpr_idx_off")
    e("    s_add_u32 s20, s20, 8")
    e("    s_setpc_b64 s[22:23]")
    if pf:
        e("    .fill 80, 4, 0xbf810000")
    e('.section .rodata,"a"')
    e(".p2align 6")
    e(f".amdhsa_kernel {NAME}_kernel")
    e(f"  .amdhsa_next_free_vgpr {nv}")
    e("  .amdhsa_next_free_sgpr 32")
    e(f"  .amdhsa_accum_offset {(nv + 3) // 4 * 4}")
    e("  .amdhsa_group_segment_fixed_size 0")
    e("  .amdhsa_kernarg_size 40")
    e("  .amdhsa_user_sgpr_count 2")
    e("  .amdhsa_user_sgpr_kernarg_segment_ptr 1")
    e("  .amdhsa_system_sgpr_workgroup_id_x 1")
    e("  .amdhsa_float_denorm_mode_32 3")
    e(".end_amdhsa_kernel")
    return "\n".join(l.rstrip() for l in o) + "\n"


if __name__ == "__main__":
    import gen2, gen3
    for spec in sys.argv[1:]:
        mod, sp = gen, spec
        if spec[1] == ":":
            mod, sp = {"2": gen2.gen, "3": gen3.gen}[spec[0]], spec[2:]
        nm = "var/z_" + spec.replace("=", "").replace(",", "_").replace("+", "").replace(":", "_") + ".s"
        open("code/" + nm, "w").write(mod(**parse(sp)))
        print(nm)
```

```python
import sys
sys.path.insert(0, "gen")
from gen import HEADER, NAME, ROWS, ROWB, log2
from gen2 import parse


def gen(R=8, ld="nt", st="sc1 nt", pf=1, gate=0, gj=0, gj1=None, gpos=8, bpos=0, pad=0, mode="P", drop=None, dn=2, tlb=0, sj=None, st2=None, split=0, gld="", D=None, lb="", burst=1, mp=None, swz="", sto="", xr="", prio=0):
    W = 32 // R
    nwg = 256
    lds = 64 if gate else 0
    o = []
    e = o.append
    e(HEADER.rstrip())
    e(f"; @launch grid=({nwg},1,1) block=({64*W},1,1) lds={lds}")
    e('.amdgcn_target "amdgcn-amd-amdhsa--gfx950"')
    e(".text")
    e(f".globl {NAME}_kernel")
    e(".p2align 8")
    e(f".type {NAME}_kernel,@function")
    e(f"{NAME}_kernel:")
    e("    s_load_dwordx4 s[4:7], s[0:1], 0")
    if tlb:
        e("    s_load_dwordx2 s[8:9], s[0:1], 16")
    e(f"    s_cmpk_ge_u32 s2, {nwg}")
    e("    s_cbranch_scc1 L_end")
    for _ in range(pad):
        e("    s_nop 0")
    e("    s_lshl_b32 s3, s2, 14")
    e("    s_bitset1_b32 s3, 12")
    if R == 8:
        if pf == 2:
            e("    s_getpc_b64 s[10:11]")
            e("    v_mov_b32 v1, 0")
            e("    v_lshl_add_u64 v[4:5], v[0:1], 4, s[10:11]")
            e("    global_load_dword v5, v[4:5], off")
        e("    v_mul_u32_u24 v1, 0x10010, v0")
        if pf == 1:
            e("    s_getpc_b64 s[10:11]")
            e("    v_lshlrev_b32 v5, 4, v0")
            e("    global_load_dword v5, v5, s[10:11]")
        e("    v_and_b32 v2, 0xc003f0, v1")
        e("    v_or_b32 v2, s3, v2")
    else:
        mul, mask = {4: (0x8080, 0xC02000), 2: (0x4040, 0xC03000)}[R]
        if R == 2:
            o.pop()
        e("    v_and_b32 v1, 63, v0")
        e("    v_xor_b32 v2, v1, v0")
        e(f"    v_mul_u32_u24 v2, {mul:#x}, v2")
        e(f"    v_and_b32 v2, {mask:#x}, v2")
        e("    v_lshl_or_b32 v1, v1, 4, s3")
        e("    v_or_b32 v2, v1, v2")
        if pf:
            e("    s_getpc_b64 s[10:11]")
            e("    v_lshlrev_b32 v5, 2, v0")
            e("    global_load_dword v5, v5, s[10:11]")
    if mp:
        pos = {k: [i for i, t in enumerate(mp) if t == k] for k in "rwxc"}
        assert len(mp) == 13

        def runs(p):
            out, i = [], 0
            while i < len(p):
                j = i
                while j + 1 < len(p) and p[j + 1] == p[j] + 1:
                    j += 1
                out.append((i, j - i + 1, p[i]))
                i = j + 1
            return out
        e("    s_mov_b32 s3, 0")
        gp = pos["x"] + pos["c"] or [mp.index(str(i)) for i in range(8)]
        for src, n, dst in runs(gp):
            e(f"    s_bfe_u32 s17, s2, {(n << 16) | src:#x}")
            e(f"    s_lshl_b32 s17, s17, {dst + 11}")
            e("    s_or_b32 s3, s3, s17")
        for rb, gb in zip(swz[1::2], swz[2::2]):
            e(f"    s_bfe_u32 s17, s2, {(1 << 16) | int(gb):#x}")
            e(f"    s_lshl_b32 s17, s17, {pos['r'][int(rb)] + 11}")
            e("    s_xor_b32 s3, s3, s17")
        for p, gb in zip(xr[1::2], xr[2::2]):
            e(f"    s_bfe_u32 s17, s2, {(1 << 16) | int(gb):#x}")
            e(f"    s_lshl_b32 s17, s17, {int(p, 16) + 11}")
            e("    s_xor_b32 s3, s3, s17")
        e("    v_and_b32 v2, 0x3f0, v2")
        e("    v_or_b32 v2, s3, v2")
        for src, n, dst in runs(pos["w"]):
            e(f"    v_bfe_u32 v3, v0, {6 + src}, {n}")
            e(f"    v_lshl_or_b32 v2, v3, {dst + 11}, v2")
    if drop is not None:
        e("    v_readfirstlane_b32 s20, v0")
        e("    s_and_b32 s21, s2, 1")
        e(f"    s_cmp_eq_u32 s21, {drop}")
        e("    s_cselect_b32 s20, s20, 0x1000")
    if prio:
        e("    v_readfirstlane_b32 s20, v0")
        for k in range(3):
            e(f"    s_setprio {3 - k if prio == 1 else k}")
            e(f"    s_cmpk_lt_u32 s20, {64 * (k + 1)}")
            e("    s_cbranch_scc1 L_prio")
        e(f"    s_setprio {0 if prio == 1 else 3}")
        e("L_prio:")
    Z, ONE = 38, 39
    if gate:
        e(f"    v_mov_b32 v{Z}, 0")
        e(f"    ds_write_b32 v{Z}, v{Z}")
    e("    s_waitcnt lgkmcnt(0)")

    EPS, A, GF, T = 0, 4, 6, 22
    G = T + 2
    X = 40
    nv = X + 8 * R + (8 if mp else 0)
    bias = 0 if R == 2 else 4096

    areg = {0: "v2"}

    def va(r, h):
        if mp:
            off = sum(((r >> i) & 1) << (p + 11) for i, p in enumerate(pos["r"])) + h * 1024
            base = off & ~0xFFF
            if base not in areg:
                areg[base] = f"v{X + 8 * R + len(areg) - 1}"
                e(f"    v_xor_b32 {areg[base]}, {base:#x}, v2")
            return areg[base], off - base
        off = r * ROWB + h * 1024
        return ("v2" if off < 8192 else "v3"), (off % 8192) - bias

    ops = []
    n = 0

    def loadg():
        e("    v_and_b32 v1, 0x3f0, v2")
        e(f"    global_load_dwordx4 v[{G}:{G+3}], v1, s[6:7] {gld}")
        e(f"    global_load_dwordx4 v[{G+4}:{G+7}], v1, s[6:7] offset:1024 {gld}")
        ops.extend(["g", "g"])
        if tlb:
            e("    v_xor_b32 v1, v1, v2")
            e("    global_load_dword v5, v1, s[8:9] nt")
            ops.append("t")

    if gpos == 0:
        loadg()
    bars = [int(c, 36) for c in str(lb).lstrip("b")]
    issued = [0]

    def load(r):
        for h in range(2):
            n = issued[0]
            if drop is not None and n == 0:
                e(f"    s_cmpk_lt_u32 s20, {64 * dn}")
                e("    s_cbranch_scc1 L_skipld")
            if drop is not None and n == 2:
                e("L_skipld:")
            if (gate and n == bpos) or n in bars:
                e("    s_barrier")
            if n == 8 and not mp:
                e("    v_add_u32 v3, 0x2000, v2")
            v, off = va(r, h)
            e(f"    global_load_dwordx4 v[{X+8*r+4*h}:{X+8*r+4*h+3}], {v}, s[4:5] offset:{off} {ld}")
            ops.append(r)
            issued[0] += 1
            if issued[0] == min(gpos, 2 * R):
                loadg()

    D = D or R
    for r in range(D):
        load(r)
    if not tlb:
        e("    s_load_dwordx2 s[8:9], s[0:1], 16")
    e("    s_mov_b32 s16, 0xffff0000")
    e(f"    v_mov_b32 v{EPS}, 0x358637bd")
    if gate:
        e(f"    v_mov_b32 v{ONE}, 1")
    done = -1
    pol = lambda q: st if (st2 is None or q < split) else st2

    def store(q):
        for h in range(2):
            v, off = va(q, h)
            e(f"    global_store_dwordx4 {v}, v[{X+8*q+4*h}:{X+8*q+4*h+3}], s[8:9] offset:{off} {pol(q)}")
            ops.append("s")

    for r in range(R):
        x = X + 8 * r
        a = A
        e(f"    v_mov_b32 v{a}, 0")
        last = max(i for i, op in enumerate(ops) if op == r or op == "g")
        if last > done:
            e(f"    s_waitcnt vmcnt({len(ops) - 1 - last})")
            done = last
        for _ in range(burst):
            if issued[0] < 2 * R:
                load(issued[0] // 2)
        if gate:
            if gj1 is None:
                if r == gj:
                    e(f"    ds_add_u32 v{Z}, v{ONE}")
            else:
                for par, j in ((0, gj), (1, gj1)):
                    if r == j:
                        e("    s_bitcmp1_b32 s2, 0")
                        e(f"    s_cbranch_scc{1 - par} L_noarr{par}")
                        e(f"    ds_add_u32 v{Z}, v{ONE}")
                        e(f"L_noarr{par}:")
        if sj is not None and r == sj:
            e("    s_waitcnt lgkmcnt(0)")
            for q in range(r):
                store(q)
        if r == 0:
            for d in range(8):
                if mode == "P":
                    e(f"    v_lshlrev_b32 v{GF+2*d}, 16, v{G+d}")
                else:
                    e(f"    v_and_b32 v{GF+2*d}, 0xffff, v{G+d}")
                e(f"    v_and_b32 v{GF+2*d+1}, s16, v{G+d}")
        for d in range(8):
            e(f"    v_dot2c_f32_bf16 v{a}, v{x+d}, v{x+d}")
        fill = []
        for d in range(8):
            if mode == "P":
                fill.append(f"    v_lshlrev_b32 v{T+2*d}, 16, v{x+d}")
                fill.append(f"    v_and_b32 v{T+2*d+1}, s16, v{x+d}")
            else:
                fill.append(f"    v_dot2_f32_bf16 v{T+2*d}, v{x+d}, v{GF+2*d}, 0")
                fill.append(f"    v_dot2_f32_bf16 v{T+2*d+1}, v{x+d}, v{GF+2*d+1}, 0")
        for d in range(8 if mode == "P" else 0):
            fill.append(f"    v_pk_mul_f32 v[{T+2*d}:{T+2*d+1}], v[{T+2*d}:{T+2*d+1}], v[{GF+2*d}:{GF+2*d+1}]")

        def padn(k):
            for _ in range(k):
                e(fill.pop(0) if fill else "    s_nop 0")

        padn(3)
        for ctl in ("quad_perm:[1,0,3,2] row_mask:0xf", "quad_perm:[2,3,0,1] row_mask:0xf",
                    "row_half_mirror row_mask:0xf", "row_mirror row_mask:0xf",
                    "row_bcast:15 row_mask:0xa", "row_bcast:31 row_mask:0xc"):
            e(f"    v_add_f32_dpp v{a}, v{a}, v{a} {ctl} bank_mask:0xf")
            if "bcast:31" not in ctl:
                padn(2)
        e(f"    v_fmamk_f32 v{a}, v{a}, 0x3a800000, v{EPS}")
        e(f"    v_rsq_f32 v{a}, v{a}")
        padn(1)
        e(f"    v_readlane_b32 s18, v{a}, 63")
        padn(max(2, len(fill)))
        for d in range(8):
            e(f"    v_pk_mul_f32 v[{T+2*d}:{T+2*d+1}], v[{T+2*d}:{T+2*d+1}], s[18:19] op_sel_hi:[1,0]")
        for d in range(8):
            e(f"    v_cvt_pk_bf16_f32 v{x+d}, v{T+2*d}, v{T+2*d+1}")
        if sj is not None and r >= sj:
            store(r)
    if gate:
        for par, j in ((0, gj), (1, gj1)):
            if j == -1:
                e("    s_bitcmp1_b32 s2, 0")
                e(f"    s_cbranch_scc{par} L_nopoll")
        e("L_poll:")
        e(f"    ds_read_b32 v{ONE}, v{Z}")
        e("    s_waitcnt lgkmcnt(0)")
        e(f"    v_readfirstlane_b32 s28, v{ONE}")
        e("    s_nop 0")
        e(f"    s_cmpk_lt_u32 s28, {64 * W}")
        e("    s_cbranch_scc1 L_poll")
        e("L_nopoll:")
    e("    s_waitcnt lgkmcnt(0)")
    for r in ([int(c) for c in sto[1:]] if sto else range(R if sj is None else 0)):
        for h in range(2):
            if drop is not None and r == 0 and h == 0:
                e(f"    s_cmpk_lt_u32 s20, {64 * dn}")
                e("    s_cbranch_scc1 L_skipst")
            if drop is not None and r == 1 and h == 0:
                e("L_skipst:")
            v, off = va(r, h)
            e(f"    global_store_dwordx4 {v}, v[{X+8*r+4*h}:{X+8*r+4*h+3}], s[8:9] offset:{off} {pol(r)}")
    e("L_end:")
    e("    s_endpgm")
    if pf:
        e(f"    .fill ({NAME}_kernel + 4224 - .) / 4, 4, 0xbf810000")
    e('.section .rodata,"a"')
    e(".p2align 6")
    e(f".amdhsa_kernel {NAME}_kernel")
    e(f"  .amdhsa_next_free_vgpr {nv}")
    e("  .amdhsa_next_free_sgpr 32")
    e(f"  .amdhsa_accum_offset {(nv + 3) // 4 * 4}")
    e("  .amdhsa_group_segment_fixed_size 0")
    e("  .amdhsa_kernarg_size 40")
    e("  .amdhsa_user_sgpr_count 2")
    e("  .amdhsa_user_sgpr_kernarg_segment_ptr 1")
    e("  .amdhsa_system_sgpr_workgroup_id_x 1")
    e("  .amdhsa_float_denorm_mode_32 3")
    e(".end_amdhsa_kernel")
    return "\n".join(l.rstrip() for l in o) + "\n"


if __name__ == "__main__":
    import gen2
    for spec in sys.argv[1:]:
        mod = gen2.gen if spec.startswith("2:") else gen
        sp = spec[2:] if spec.startswith("2:") else spec
        nm = "var/q_" + spec.replace("=", "").replace(",", "_").replace("+", "").replace(":", "_") + ".s"
        open("code/" + nm, "w").write(mod(**parse(sp)))
        print(nm)
```
